```python
import torch

def _softmax(x, axis=-1):
    return torch.softmax(x, dim=axis)
def _gelu(x):
    return torch.nn.functional.gelu(x, approximate="tanh")
def _silu(x):
    return torch.nn.functional.silu(x)
def _sigmoid(x):
    return torch.sigmoid(x)
def _layernorm(x, axis=-1, eps=1e-5):
    m = x.mean(dim=axis, keepdim=True)
    v = x.var(dim=axis, keepdim=True, unbiased=False)
    return (x - m) / torch.sqrt(v + eps)
def _scatter_add(tgt, idx, src, axis=0):
    return tgt.clone().index_add_(axis, idx, src)
def _segment_sum(src, seg, n):
    out = torch.zeros((n,) + src.shape[1:], dtype=src.dtype)
    return out.index_add_(0, seg, src)
def _pad(x, pw):
    flat = tuple(v for pair in reversed(pw) for v in pair)
    return torch.nn.functional.pad(x, flat)

kernel_name = 'standalone__groupnorm__sampling'

def setup_inputs():

    _w = (lambda a: (lambda t: t.to(torch.bfloat16) if t.is_floating_point() else t)(torch.as_tensor(a)))
    B = 32
    G = 32
    cpg = max(1, 576 // G)
    C = G * cpg
    H, W = 32, 16
    return {
        "x": _w(abs((lambda *s: torch.randn(*s, dtype=torch.bfloat16) * 0.05)(B, C, H, W))),
        "g": _w((lambda *s: torch.randn(*s, dtype=torch.bfloat16) * 0.05)(C) + 1.0),
        "b": _w((lambda *s: torch.randn(*s, dtype=torch.bfloat16) * 0.4)(C)),
    }

def reference(x, g, b):
    G = 32
    B, C, H, W = x.shape[0], x.shape[1], x.shape[2], x.shape[3]
    xr = x.reshape(B, G, C // G, H, W)
    mu = xr.mean(axis=(2, 3, 4), keepdims=True)
    var = ((xr - mu) ** 2).mean(axis=(2, 3, 4), keepdims=True)
    xn = (xr - mu) / torch.sqrt(var + 1e-5)
    xn = xn.reshape(B, C, H, W)
    return xn * g[None, :, None, None] + b[None, :, None, None]
```

```python
base = open('a_ld_nt_st_sc01.s').read()
K = "standalone__groupnorm__sampling_kernel"
s = base.replace("; @launch grid=(1024,1,1) block=(64,1,1) lds=0\n",
  f"; @launch kernel={K} grid=(1024,1,1) block=(64,1,1) lds=0\n; @launch kernel=probe_kernel grid=(1,1,1) block=(64,1,1) lds=0\n")
probe = """
.text
.globl probe_kernel
.p2align 8
.type probe_kernel,@function
probe_kernel:
    s_load_dwordx8 s[4:11], s[0:1], 0
    s_load_dwordx2 s[12:13], s[0:1], 32
    s_cmp_lg_u32 s2, 0
    s_cbranch_scc1 P_end
    s_mov_b64 exec, 1
    s_getreg_b32 s30, hwreg(HW_REG_XCC_ID)
    s_waitcnt lgkmcnt(0)
"""
def buf(b, dst, mind, tag):
    return f"""
    s_mov_b32 s{dst}, 0
    s_mov_b32 s{mind}, 0x7fffffff
    s_mov_b32 s16, 0            ; page
P_page{tag}:
    s_mov_b32 s17, 0            ; i
    s_mov_b32 s18, 0
    s_mov_b32 s19, 0
P_i{tag}:
    s_lshl_b32 s20, s16, 21
    s_mul_i32 s21, s17, 8192
    s_add_u32 s20, s20, s21
    s_lshr_b32 s21, s17, 1
    s_and_b32 s21, s21, 31
    s_lshl_b32 s21, s21, 8
    s_add_u32 s20, s20, s21
    v_mov_b32 v1, s20
    s_waitcnt vmcnt(0) lgkmcnt(0)
    s_memtime s[22:23]
    s_waitcnt lgkmcnt(0)
    global_load_dword v2, v1, s[{b}:{b+1}] nt
    s_waitcnt vmcnt(0)
    s_memtime s[24:25]
    s_waitcnt lgkmcnt(0)
    s_sub_u32 s22, s24, s22
    s_min_u32 s22, s22, 1500
    s_cmp_lt_u32 s17, 2
    s_cselect_b32 s22, 0, s22
    s_and_b32 s21, s17, 1
    s_cmp_eq_u32 s21, 0
    s_cselect_b32 s23, s22, 0
    s_cselect_b32 s24, 0, s22
    s_add_u32 s18, s18, s23
    s_add_u32 s19, s19, s24
    s_add_u32 s17, s17, 1
    s_cmp_lt_u32 s17, 30
    s_cbranch_scc1 P_i{tag}
    s_cmp_gt_u32 s18, s19
    s_cselect_b32 s21, 1, 0
    s_lshl_b32 s21, s21, s16
    s_or_b32 s{dst}, s{dst}, s21
    s_sub_i32 s21, s18, s19
    s_abs_i32 s21, s21
    s_min_u32 s{mind}, s{mind}, s21
    s_add_u32 s16, s16, 1
    s_cmp_lt_u32 s16, 9
    s_cbranch_scc1 P_page{tag}
"""
probe += buf(4, 32, 34, "x") + buf(10, 33, 35, "o")
probe += """
    v_mov_b32 v0, 0
    v_mov_b32 v4, s32
    v_mov_b32 v5, s33
    v_mov_b32 v6, s34
    v_mov_b32 v7, s35
    global_store_dwordx4 v0, v[4:7], s[12:13]
    v_mov_b32 v8, s30
    v_mov_b32 v9, s4
    v_mov_b32 v10, s10
    v_mov_b32 v11, s18
    global_store_dwordx4 v0, v[8:11], s[12:13] offset:16
    s_waitcnt vmcnt(0)
P_end:
    s_endpgm
.section .rodata,"a"
.p2align 6
.amdhsa_kernel probe_kernel
  .amdhsa_next_free_vgpr 16
  .amdhsa_next_free_sgpr 48
  .amdhsa_accum_offset 16
  .amdhsa_group_segment_fixed_size 0
  .amdhsa_kernarg_size 48
  .amdhsa_user_sgpr_count 2
  .amdhsa_user_sgpr_kernarg_segment_ptr 1
  .amdhsa_system_sgpr_workgroup_id_x 1
.end_amdhsa_kernel
"""
open('probe.s','w').write(s + probe)
```

```python
import sys
ref = open('standalone__groupnorm__sampling.s.ref').read().split('\n')
head = []
for l in ref:
    if l.startswith('; @launch'): break
    head.append(l)
NF, RAW, F, XT = 6, 16, 40, 88
o = []
def e(s, c=None): o.append(("    " + s).ljust(72 if c else 0) + (("; " + c) if c else ""))
def c(s): o.append("    ; " + s)
c("GroupNorm, B*G = 1024 groups of 18 channels x 512 pixels (18 KiB of bf16 each).")
c("One channel = 1 KiB = one dwordx4 wave load.  A workgroup (6 waves) owns two neighbouring groups;")
c("wave w holds 6 channels of group w/3 in registers from load to store, so x is read exactly once.")
c("Statistics are taken on d = x - K, K = first element of the group (shifted one-pass variance:")
c("var = E[d^2] - E[d]^2 stays well conditioned for any mean because K is one of the samples).")
e("s_load_dwordx8 s[4:11], s[0:1], 0", "s[4:5]=x s[6:7]=g s[8:9]=b s[10:11]=out")
e("s_cmp_ge_u32 s2, 512", "workgroups past the data leave at once")
e("s_cbranch_scc1 L_end")
e("s_mul_i32 s12, s2, 36864", "byte offset of this workgroup's two groups")
e("v_lshrrev_b32 v3, 6, v0", "wave")
e("v_lshl_add_u32 v1, v0, 4, s12")
e("s_movk_i32 s13, 5120")
e("v_mad_u32_u24 v1, v3, s13, v1", "v1 = base + wave*6144 + lane*16")
e("v_readfirstlane_b32 s3, v3", "s3 = wave")
e("v_and_b32 v0, 63, v0", "lane")
c("v[4:5] = row (lane&3) of the 4x4 bf16 identity: A operand of the unpacking MFMA")
e("v_and_b32 v3, 3, v0")
e("v_lshlrev_b32 v3, 4, v3")
e("v_mov_b32 v4, 0x3f80")
e("v_mov_b32 v5, 0")
e("v_lshlrev_b64 v[4:5], v3, v[4:5]")
e("s_mul_i32 s17, s3, 86")
e("s_lshr_b32 s17, s17, 8", "s17 = wave/3 = group inside the workgroup")
e("s_mul_i32 s18, s17, 18432")
e("s_add_u32 s18, s18, s12", "s18 = byte offset of this wave's group")
e("s_and_b32 s14, s2, 15")
e("s_mul_i32 s14, s14, 36")
e("s_mul_i32 s15, s3, 6")
e("s_add_u32 s14, s14, s15", "first channel (0..575) of this wave")
e("v_min_u32 v3, 5, v0")
e("v_add_lshl_u32 v3, v3, s14, 1", "lane c<6 -> byte offset of g/b of its channel c")
e("v_mov_b32 v6, 0")
e("v_mov_b32 v7, 0")
e("s_waitcnt lgkmcnt(0)")
e("s_load_dword s16, s[4:5], s18", "K (low half)")
def addr(p): return ("v1", p * 1024) if p < 4 else ("v2", p * 1024 - 8192)
for p in range(NF):
    if p == 4: e("v_add_u32 v2, 8192, v1")
    v, off = addr(p)
    e(f"global_load_dwordx4 v[{RAW+4*p}:{RAW+4*p+3}], {v}, s[4:5] offset:{off} nt", f"channel {p}")
e("global_load_short_d16_hi v6, v3, s[6:7]", "gamma as f32 (bf16 into the high half)")
e("global_load_short_d16_hi v7, v3, s[8:9]", "beta")
e("s_mov_b32 s22, 0x38e38e39", "1/9216")
e("s_lshl_b32 s23, s3, 3")
e("s_mul_i32 s21, s17, 24")
e("v_mov_b32 v3, s23", "LDS slot of this wave")
e("v_mov_b32 v0, s21", "LDS slots of this group")
e("s_waitcnt lgkmcnt(0)")
e("s_lshl_b32 s16, s16, 16")
e("s_xor_b32 s16, s16, 0x80000000", "-K as f32")
for j in range(4): e(f"v_mov_b32 v{8+j}, s16", "C operand = -K" if j == 0 else None)
e("s_nop 0", "VALU write -> MFMA SrcC: 2 wait states (with the s_waitcnt)")
c("per channel: D = I*x - K unpacks 8 bf16 per lane to f32 d; sums of d and d^2 trail by one channel")
def acc(p):
    f = F + 8 * p
    for j in range(4):
        r = f"v[{f+2*j}:{f+2*j+1}]"
        if p == 0 and j == 0:
            e(f"v_pk_mul_f32 v[14:15], {r}, {r}")
            e(f"v_pk_add_f32 v[12:13], {r}, v[{f+2}:{f+3}]")
            continue
        if not (p == 0 and j == 1): e(f"v_pk_add_f32 v[12:13], v[12:13], {r}")
        e(f"v_pk_fma_f32 v[14:15], {r}, {r}, v[14:15]")
for p in range(NF):
    e(f"s_waitcnt vmcnt({NF + 1 - p})")
    r, f = RAW + 4 * p, F + 8 * p
    e(f"v_mfma_f32_4x4x4_16b_bf16 v[{f}:{f+3}], v[4:5], v[{r}:{r+1}], v[8:11]")
    e(f"v_mfma_f32_4x4x4_16b_bf16 v[{f+4}:{f+7}], v[4:5], v[{r+2}:{r+3}], v[8:11]")
    if p == 1: e("s_nop 0", "2-pass MFMA result -> VALU read: 5 wait states")
    if p > 0: acc(p - 1)
acc(NF - 1)
e("v_add_f32 v12, v12, v13", "lane sum of d")
e("v_add_f32 v13, v14, v15", "lane sum of d^2")
e("v_mov_b32 v15, 0x3727c5ac", "eps = 1e-5")
c("wave reduction, result in lane 63 (VALU write -> DPP read: 2 wait states)")
D = ("quad_perm:[1,0,3,2] row_mask:0xf", "quad_perm:[2,3,0,1] row_mask:0xf", "row_half_mirror row_mask:0xf",
     "row_mirror row_mask:0xf", "row_bcast:15 row_mask:0xa", "row_bcast:31 row_mask:0xc")
for i, d in enumerate(D):
    e(f"v_add_f32_dpp v12, v12, v12 {d} bank_mask:0xf")
    e(f"v_add_f32_dpp v13, v13, v13 {d} bank_mask:0xf")
    if i < 5: e("s_nop 0")
e("s_mov_b32 exec_lo, 0")
e("s_brev_b32 exec_hi, 1", "lane 63 only")
e("ds_write_b64 v3, v[12:13]")
e("s_mov_b64 exec, -1")
e("s_waitcnt lgkmcnt(0)")
e("s_barrier")
e(f"ds_read2_b64 v[{XT}:{XT+3}], v0 offset1:1", "the three partial sums of this group")
e(f"ds_read_b64 v[{XT+4}:{XT+5}], v0 offset:16")
e("s_waitcnt lgkmcnt(0)")
e(f"v_pk_add_f32 v[{XT}:{XT+1}], v[{XT}:{XT+1}], v[{XT+2}:{XT+3}]")
e(f"v_pk_add_f32 v[{XT}:{XT+1}], v[{XT}:{XT+1}], v[{XT+4}:{XT+5}]")
e(f"v_mul_f32 v12, s22, v{XT}", "m = E[d] = mean - K")
e(f"v_fma_f32 v14, s22, v{XT+1}, v15", "E[d^2] + eps")
e("v_fma_f32 v14, -v12, v12, v14", "var + eps")
e("v_max_f32 v14, v14, v15", "rounding cannot take var below 0")
e("v_rsq_f32 v14, v14", "1/sqrt(var + eps)")
e("s_waitcnt vmcnt(0)", "gamma, beta (also the wait state after the rsq)")
e("v_mul_f32 v6, v6, v14", "lane c: scale_c = gamma_c * rstd")
e("v_fma_f32 v7, -v12, v6, v7", "lane c: bias_c = beta_c - m * scale_c")
c("out = d * scale_c + bias_c; (scale, bias) of the next channel is fetched one channel ahead")
e("v_readlane_b32 s28, v6, 0")
e("v_readlane_b32 s29, v7, 0")
for p in range(NF):
    q = 28 + 2 * (p % 2)
    if p + 1 < NF:
        qn = 28 + 2 * ((p + 1) % 2)
        e(f"v_readlane_b32 s{qn}, v6, {p+1}")
        e(f"v_readlane_b32 s{qn+1}, v7, {p+1}")
    r, f = RAW + 4 * p, F + 8 * p
    for j in range(4):
        e(f"v_pk_fma_f32 v[{f+2*j}:{f+2*j+1}], v[{f+2*j}:{f+2*j+1}], s[{q}:{q+1}], s[{q}:{q+1}] op_sel:[0,0,1] op_sel_hi:[1,0,1]")
    for j in range(4):
        e(f"v_cvt_pk_bf16_f32 v{r+j}, v{f+2*j}, v{f+2*j+1}")
    v, off = addr(p)
    e(f"global_store_dwordx4 {v}, v[{r}:{r+3}], s[10:11] offset:{off} nt")
txt = "\n".join(head) + "\n; @launch grid=(512,1,1) block=(384,1,1) lds=48\n" + """.amdgcn_target "amdgcn-amd-amdhsa--gfx950"
.text
.globl standalone__groupnorm__sampling_kernel
.p2align 8
.type standalone__groupnorm__sampling_kernel,@function
standalone__groupnorm__sampling_kernel:
""" + "\n".join(o) + """
L_end:
    s_endpgm
.section .rodata,"a"
.p2align 6
.amdhsa_kernel standalone__groupnorm__sampling_kernel
  .amdhsa_next_free_vgpr 94
  .amdhsa_next_free_sgpr 32
  .amdhsa_accum_offset 96
  .amdhsa_group_segment_fixed_size 0
  .amdhsa_kernarg_size 48
  .amdhsa_user_sgpr_count 2
  .amdhsa_user_sgpr_kernarg_segment_ptr 1
  .amdhsa_system_sgpr_workgroup_id_x 1
  .amdhsa_float_denorm_mode_32 3
.end_amdhsa_kernel
"""
open(sys.argv[1], "w").write(txt)
```

```python
import sys
ref = open('standalone__groupnorm__sampling.s.ref').read().split('\n')
head = []
for l in ref:
    if l.startswith('; @launch'): break
    head.append(l)
NF, RAW, F, XT = 6, 16, 40, 88
o = []
def e(s, c=None): o.append(("    " + s).ljust(72 if c else 0) + (("; " + c) if c else ""))
def c(s): o.append("    ; " + s)
c("GroupNorm, B*G = 1024 groups of 18 channels x 512 pixels (18 KiB of bf16 each).")
c("One channel = 1 KiB = one dwordx4 wave load.  A workgroup (6 waves) owns two neighbouring groups;")
c("wave w holds 6 channels of group w/3 in registers from load to store, so x is read exactly once.")
c("Statistics are taken on d = x - K, K = first element of the group (shifted one-pass variance:")
c("var = E[d^2] - E[d]^2 stays well conditioned for any mean because K is one of the samples).")
e("s_load_dwordx8 s[4:11], s[0:1], 0", "s[4:5]=x s[6:7]=g s[8:9]=b s[10:11]=out")
e("s_cmp_ge_u32 s2, 512", "workgroups past the data leave at once")
e("s_cbranch_scc1 L_end")
e("s_mul_i32 s12, s2, 36864", "byte offset of this workgroup's two groups")
e("v_lshrrev_b32 v3, 6, v0", "wave")
e("v_lshl_add_u32 v1, v0, 4, s12")
e("s_movk_i32 s13, 5120")
e("v_mad_u32_u24 v1, v3, s13, v1", "v1 = base + wave*6144 + lane*16")
e("v_readfirstlane_b32 s3, v3", "s3 = wave")
e("v_and_b32 v0, 63, v0", "lane")
c("v[4:5] = row (lane&3) of the 4x4 bf16 identity: A operand of the unpacking MFMA")
e("v_and_b32 v3, 3, v0")
e("v_lshlrev_b32 v3, 4, v3")
e("v_mov_b32 v4, 0x3f80")
e("v_mov_b32 v5, 0")
e("v_lshlrev_b64 v[4:5], v3, v[4:5]")
e("s_mul_i32 s17, s3, 86")
e("s_lshr_b32 s17, s17, 8", "s17 = wave/3 = group inside the workgroup")
e("s_mul_i32 s18, s17, 18432")
e("s_add_u32 s18, s18, s12", "s18 = byte offset of this wave's group")
e("s_and_b32 s14, s2, 15")
e("s_mul_i32 s14, s14, 36")
e("s_mul_i32 s15, s3, 6")
e("s_add_u32 s14, s14, s15", "first channel (0..575) of this wave")
e("v_min_u32 v3, 5, v0")
e("v_add_lshl_u32 v3, v3, s14, 1", "lane c<6 -> byte offset of g/b of its channel c")
e("v_mov_b32 v6, 0")
e("v_mov_b32 v7, 0")
e("s_waitcnt lgkmcnt(0)")
e("s_load_dword s16, s[4:5], s18", "K (low half)")
def addr(p): return ("v1", p * 1024) if p < 4 else ("v2", p * 1024 - 8192)
for p in range(NF):
    if p == 4: e("v_add_u32 v2, 8192, v1")
    v, off = addr(p)
    e(f"global_load_dwordx4 v[{RAW+4*p}:{RAW+4*p+3}], {v}, s[4:5] offset:{off} nt", f"channel {p}")
e("global_load_short_d16_hi v6, v3, s[6:7]", "gamma as f32 (bf16 into the high half)")
e("global_load_short_d16_hi v7, v3, s[8:9]", "beta")
e("s_mov_b32 s22, 0x38e38e39", "1/9216")
e("s_lshl_b32 s23, s3, 3")
e("s_mul_i32 s21, s17, 24")
e("v_mov_b32 v3, s23", "LDS slot of this wave")
e("v_mov_b32 v0, s21", "LDS slots of this group")
e("s_waitcnt lgkmcnt(0)")
e("s_lshl_b32 s16, s16, 16")
e("s_xor_b32 s16, s16, 0x80000000", "-K as f32")
for j in range(4): e(f"v_mov_b32 v{8+j}, s16", "C operand = -K" if j == 0 else None)
e("s_nop 0", "VALU write -> MFMA SrcC: 2 wait states (with the s_waitcnt)")
c("per channel: D = I*x - K unpacks 8 bf16 per lane to f32 d; sums of d and d^2 trail by one channel")
def acc(p):
    f = F + 8 * p
    for j in range(4):
        r = f"v[{f+2*j}:{f+2*j+1}]"
        if p == 0 and j == 0:
            e(f"v_pk_mul_f32 v[14:15], {r}, {r}")
            e(f"v_pk_add_f32 v[12:13], {r}, v[{f+2}:{f+3}]")
            continue
        if not (p == 0 and j == 1): e(f"v_pk_add_f32 v[12:13], v[12:13], {r}")
        e(f"v_pk_fma_f32 v[14:15], {r}, {r}, v[14:15]")
for p in range(NF):
    e(f"s_waitcnt vmcnt({NF + 1 - p})")
    r, f = RAW + 4 * p, F + 8 * p
    e(f"v_mfma_f32_4x4x4_16b_bf16 v[{f}:{f+3}], v[4:5], v[{r}:{r+1}], v[8:11]")
    e(f"v_mfma_f32_4x4x4_16b_bf16 v[{f+4}:{f+7}], v[4:5], v[{r+2}:{r+3}], v[8:11]")
    if p == 1: e("s_nop 0", "2-pass MFMA result -> VALU read: 5 wait states")
    if p > 0: acc(p - 1)
acc(NF - 1)
e("v_add_f32 v12, v12, v13", "lane sum of d")
e("v_add_f32 v13, v14, v15", "lane sum of d^2")
e("v_mov_b32 v15, 0x3727c5ac", "eps = 1e-5")
c("wave reduction, result in lane 63 (VALU write -> DPP read: 2 wait states)")
D = ("quad_perm:[1,0,3,2] row_mask:0xf", "quad_perm:[2,3,0,1] row_mask:0xf", "row_half_mirror row_mask:0xf",
     "row_mirror row_mask:0xf", "row_bcast:15 row_mask:0xa", "row_bcast:31 row_mask:0xc")
for i, d in enumerate(D):
    e(f"v_add_f32_dpp v12, v12, v12 {d} bank_mask:0xf")
    e(f"v_add_f32_dpp v13, v13, v13 {d} bank_mask:0xf")
    if i < 5: e("s_nop 0")
e("s_mov_b32 exec_lo, 0")
e("s_brev_b32 exec_hi, 1", "lane 63 only")
e("ds_write_b64 v3, v[12:13]")
e("s_mov_b64 exec, -1")
e("s_waitcnt lgkmcnt(0)")
e("s_barrier")
e(f"ds_read2_b64 v[{XT}:{XT+3}], v0 offset1:1", "the three partial sums of this group")
e(f"ds_read_b64 v[{XT+4}:{XT+5}], v0 offset:16")
e("s_waitcnt lgkmcnt(0)")
e(f"v_pk_add_f32 v[{XT}:{XT+1}], v[{XT}:{XT+1}], v[{XT+2}:{XT+3}]")
e(f"v_pk_add_f32 v[{XT}:{XT+1}], v[{XT}:{XT+1}], v[{XT+4}:{XT+5}]")
c("the reference keeps mean, variance and standard deviation as bf16 tensors: round them the same way")
e(f"v_mul_f32 v13, s22, v{XT}", "E[d] = mean - K")
e(f"v_mul_f32 v14, s22, v{XT+1}", "E[d^2]")
e("v_sub_f32 v12, v13, v8", "mean")
e("v_fma_f32 v14, -v13, v13, v14", "variance about the exact mean")
e("v_cvt_pk_bf16_f32 v12, v12, v12")
e("v_max_f32 v14, 0, v14", "rounding cannot take it below 0")
e("v_lshlrev_b32 v12, 16, v12", "mu = bf16(mean)")
e("v_add_f32 v12, v12, v8", "m = mu - K")
e("v_sub_f32 v13, v13, v12")
e("v_fma_f32 v14, v13, v13, v14", "E[(x - mu)^2]")
e("v_cvt_pk_bf16_f32 v14, v14, v14")
e("v_lshlrev_b32 v14, 16, v14", "var")
e("v_add_f32 v14, v14, v15")
e("v_cvt_pk_bf16_f32 v14, v14, v14")
e("v_lshlrev_b32 v14, 16, v14", "var + eps")
e("v_sqrt_f32 v14, v14")
e("s_nop 0", "transcendental -> VALU use: 1 wait state")
e("v_cvt_pk_bf16_f32 v14, v14, v14")
e("v_lshlrev_b32 v14, 16, v14", "std")
e("v_rcp_f32 v14, v14")
e("s_waitcnt vmcnt(0)", "gamma, beta (also the wait state after the rcp)")
e("v_mul_f32 v6, v6, v14", "lane c: scale_c = gamma_c / std")
e("v_fma_f32 v7, -v12, v6, v7", "lane c: bias_c = beta_c - m * scale_c")
c("out = d * scale_c + bias_c; (scale, bias) of the next channel is fetched one channel ahead")
e("v_readlane_b32 s28, v6, 0")
e("v_readlane_b32 s29, v7, 0")
for p in range(NF):
    q = 28 + 2 * (p % 2)
    if p + 1 < NF:
        qn = 28 + 2 * ((p + 1) % 2)
        e(f"v_readlane_b32 s{qn}, v6, {p+1}")
        e(f"v_readlane_b32 s{qn+1}, v7, {p+1}")
    r, f = RAW + 4 * p, F + 8 * p
    for j in range(4):
        e(f"v_pk_fma_f32 v[{f+2*j}:{f+2*j+1}], v[{f+2*j}:{f+2*j+1}], s[{q}:{q+1}], s[{q}:{q+1}] op_sel:[0,0,1] op_sel_hi:[1,0,1]")
    for j in range(4):
        e(f"v_cvt_pk_bf16_f32 v{r+j}, v{f+2*j}, v{f+2*j+1}")
    v, off = addr(p)
    e(f"global_store_dwordx4 {v}, v[{r}:{r+3}], s[10:11] offset:{off} nt")
txt = "\n".join(head) + "\n; @launch grid=(512,1,1) block=(384,1,1) lds=48\n" + """.amdgcn_target "amdgcn-amd-amdhsa--gfx950"
.text
.globl standalone__groupnorm__sampling_kernel
.p2align 8
.type standalone__groupnorm__sampling_kernel,@function
standalone__groupnorm__sampling_kernel:
""" + "\n".join(o) + """
L_end:
    s_endpgm
.section .rodata,"a"
.p2align 6
.amdhsa_kernel standalone__groupnorm__sampling_kernel
  .amdhsa_next_free_vgpr 94
  .amdhsa_next_free_sgpr 32
  .amdhsa_accum_offset 96
  .amdhsa_group_segment_fixed_size 0
  .amdhsa_kernarg_size 48
  .amdhsa_user_sgpr_count 2
  .amdhsa_user_sgpr_kernarg_segment_ptr 1
  .amdhsa_system_sgpr_workgroup_id_x 1
  .amdhsa_float_denorm_mode_32 3
.end_amdhsa_kernel
"""
open(sys.argv[1], "w").write(txt)
```
